```python
import torch

def _softmax(x, axis=-1):
    return torch.softmax(x, dim=axis)
def _gelu(x):
    return torch.nn.functional.gelu(x, approximate="tanh")
def _silu(x):
    return torch.nn.functional.silu(x)
def _sigmoid(x):
    return torch.sigmoid(x)
def _layernorm(x, axis=-1, eps=1e-5):
    m = x.mean(dim=axis, keepdim=True)
    v = x.var(dim=axis, keepdim=True, unbiased=False)
    return (x - m) / torch.sqrt(v + eps)
def _scatter_add(tgt, idx, src, axis=0):
    return tgt.clone().index_add_(axis, idx, src)
def _segment_sum(src, seg, n):
    out = torch.zeros((n,) + src.shape[1:], dtype=src.dtype)
    return out.index_add_(0, seg, src)
def _pad(x, pw):
    flat = tuple(v for pair in reversed(pw) for v in pair)
    return torch.nn.functional.pad(x, flat)

kernel_name = 'sequential_preLN__softmax_full_mha__mixer_s_mlp__prompt'

def setup_inputs():

    _w = (lambda a: (lambda t: t.to(torch.bfloat16) if t.is_floating_point() else t)(torch.as_tensor(a)))
    def _A_setup():
        B, S, D = 1, 2048, 512
        return {
            "x": _w((lambda *s: torch.randn(*s, dtype=torch.bfloat16) * 0.05)(B, S, D)),
            "wqkv": _w((lambda *s: torch.randn(*s, dtype=torch.bfloat16) * 0.05)(D, 3 * D)),
            "wo": _w((lambda *s: torch.randn(*s, dtype=torch.bfloat16) * 0.05)(D, D)),
        }
    _A_in = _A_setup()

    def _B_setup():
        B, S, D, F = 1, 2048, 512, 1376
        return {
            "x":  _w((lambda *s: torch.randn(*s, dtype=torch.bfloat16) * 0.05)(B, S, D)),
            "w1": _w((lambda *s: torch.randn(*s, dtype=torch.bfloat16) * 3.2)(D, D) * (D ** -0.5)),
            "w2": _w((lambda *s: torch.randn(*s, dtype=torch.bfloat16) * 3.2)(D, D) * (D ** -0.5)),
            "w3": _w((lambda *s: torch.randn(*s, dtype=torch.bfloat16) * 3.2)(D, F) * (D ** -0.5)),
            "w4": _w((lambda *s: torch.randn(*s, dtype=torch.bfloat16) * 3.2)(F, D) * (F ** -0.5)),
        }
    _B_in = _B_setup()

    return {
        "A_x": _A_in["x"],
        "A_wqkv": _A_in["wqkv"],
        "A_wo": _A_in["wo"],
        "B_x": _B_in["x"],
        "B_w1": _B_in["w1"],
        "B_w2": _B_in["w2"],
        "B_w3": _B_in["w3"],
        "B_w4": _B_in["w4"],
    }

def reference(A_x, A_wqkv, A_wo, B_x, B_w1, B_w2, B_w3, B_w4):
    def _A_ref(x, wqkv, wo):
        B, S, D = x.shape
        H = 32; Dh = D // H
        qkv = (lambda x, *d: x.permute(*d))((x @ wqkv).reshape(B, S, 3, H, Dh), 2, 0, 3, 1, 4)
        q, k, v = qkv[0], qkv[1], qkv[2]
        scale = Dh ** -0.5
        scores = torch.einsum("bhqd,bhkd->bhqk", q, k) * scale
        p = _softmax(scores, axis=-1)
        o = torch.einsum("bhqk,bhkd->bhqd", p, v)
        return (lambda x, *d: x.permute(*d))(o, 0, 2, 1, 3).reshape(B, S, D) @ wo

    def _B_ref(x, w1, w2, w3, w4):
        B, S, D = x.shape
        h = _gelu(_layernorm(x, axis=-1) @ w1)
        c = D // 4
        g0 = _pad(h[:, :, 0*c:1*c], ((0, 0), (1, 0), (0, 0)))[:, :S, :]
        g1 = _pad(h[:, :, 1*c:2*c], ((0, 0), (0, 1), (0, 0)))[:, 1:, :]
        g2 = _pad(h[:, :, 2*c:3*c], ((0, 0), (2, 0), (0, 0)))[:, :S, :]
        g3 = _pad(h[:, :, 3*c:   ], ((0, 0), (0, 2), (0, 0)))[:, 2:, :]
        hs = torch.concatenate([g0, g1, g2, g3], axis=-1) @ w2
        x1 = x + hs
        h2 = _gelu(_layernorm(x1, axis=-1) @ w3) @ w4
        return x1 + h2

    x = A_x
    h = x + _A_ref(_layernorm(x, axis=-1), A_wqkv, A_wo)
    h2 = h + _B_ref(_layernorm(h, axis=-1), B_w1, B_w2, B_w3, B_w4)
    return h2
```

```python
from gen import E, srd, MB, WS_Q, WS_K, WS_VT, WS_O
VROW = 4112
CONST = 65536 + 16 * VROW
def attn(name):
    e = E()
    e.lab(name)
    e("s_cmp_ge_u32 s2, 256")
    e("s_cbranch_scc1 L_end_" + name)
    e("s_load_dwordx2 s[6:7], s[0:1], 80")
    e("s_lshr_b32 s3, s2, 3")
    e("s_and_b32 s4, s2, 7")
    e("v_lshrrev_b32 v1, 6, v0")
    e("v_and_b32 v2, 63, v0")
    e("v_and_b32 v3, 31, v2")
    e("v_lshrrev_b32 v8, 5, v2")
    e("v_readfirstlane_b32 s5, v1")
    e("s_waitcnt lgkmcnt(0)")
    srd(e, 16, 6, WS_K, 2*MB)
    srd(e, 20, 6, WS_VT, 2*MB)
    srd(e, 24, 6, WS_Q, 2*MB)
    e("s_lshl_b32 s8, s3, 16")
    e("v_lshlrev_b32 v9, 4, v0")
    for i in range(8):
        e(f"s_add_u32 s9, s8, {i*8192}")
        e(f"buffer_load_dwordx4 v[{16+4*i}:{19+4*i}], v9, s[16:19], s9 offen")
        e(f"buffer_load_dwordx4 v[{48+4*i}:{51+4*i}], v9, s[20:23], s9 offen")
    e("s_lshl_b32 s9, s4, 8"); e("s_lshl_b32 s10, s5, 5"); e("s_add_u32 s9, s9, s10")
    e("v_add_u32 v10, s9, v3")
    e("v_lshlrev_b32 v11, 5, v10")
    e("v_lshl_add_u32 v11, v8, 4, v11")
    e("buffer_load_dwordx4 v[4:7], v11, s[24:27], s8 offen")
    e("v_lshrrev_b32 v12, 8, v0")
    e(f"v_mul_u32_u24 v12, {VROW}, v12")
    e("v_and_b32 v13, 255, v0")
    e("v_lshl_add_u32 v12, v13, 4, v12")
    e("v_add_u32 v12, 0x10000, v12")
    e("v_mov_b32 v80, 0x3f803f80"); e("v_mov_b32 v81, 0x3f803f80"); e("v_mov_b32 v82, 0x3f803f80"); e("v_mov_b32 v83, 0x3f803f80")
    e("v_cmp_gt_u32 vcc, 8, v0")
    e("s_nop 1")
    for r in range(80, 84): e(f"v_cndmask_b32 v{r}, 0, v{r}, vcc")
    e("v_min_u32 v13, 15, v0")
    e("v_lshlrev_b32 v13, 4, v13")
    e(f"v_add_u32 v13, {CONST}, v13")
    e("ds_write_b128 v13, v[80:83]")
    e("s_waitcnt vmcnt(0)")
    for i in range(8):
        e(f"ds_write_b128 v9, v[{16+4*i}:{19+4*i}] offset:{i*8192}")
        e(f"ds_write_b128 v12, v[{48+4*i}:{51+4*i}] offset:{i*2*VROW}")
    e("v_lshlrev_b32 v14, 5, v3")
    e("v_lshl_add_u32 v14, v8, 4, v14")
    e(f"v_mul_u32_u24 v15, {VROW}, v3")
    e("v_lshl_add_u32 v15, v8, 4, v15")
    e("v_add_u32 v15, 0x10000, v15")
    e("v_mov_b32 v120, 128")
    e("v_cmp_gt_u32 vcc, 16, v3")
    e(f"v_mov_b32 v121, {CONST+128}")
    e(f"v_mov_b32 v122, {CONST}")
    e("v_cndmask_b32 v120, 0, v120, vcc")
    e("v_cndmask_b32 v15, v121, v15, vcc")
    e("v_cmp_eq_u32 vcc, 16, v3")
    e("s_nop 1")
    e("v_cndmask_b32 v15, v15, v122, vcc")
    for r in range(16, 48): e(f"v_mov_b32 v{r}, 0")
    e("s_waitcnt lgkmcnt(0)")
    e("s_barrier")
    e("s_mov_b32 s11, 0")
    e("s_mov_b32 s12, 0x41000000")
    def block(first):
        e("ds_read_b128 v[80:83], v14")
        e("ds_read_b128 v[84:87], v14 offset:1024")
        for f in range(4): e(f"ds_read_b128 v[{88+4*f}:{91+4*f}], v15 offset:{32*f}")
        e("s_waitcnt lgkmcnt(4)")
        e("v_mfma_f32_32x32x16_bf16 v[48:63], v[80:83], v[4:7], v[16:31]")
        e("v_mfma_f32_32x32x16_bf16 v[64:79], v[84:87], v[4:7], v[16:31]")
        e("v_add_u32 v14, 2048, v14")
        e("v_add_u32 v15, v120, v15")
        e("s_nop 7"); e("s_nop 3")
        e("v_max3_f32 v123, v48, v49, v50")
        for r in range(51, 79, 2): e(f"v_max3_f32 v123, v123, v{r}, v{r+1}")
        e("v_max_f32 v123, v123, v79")
        e("v_mov_b32 v124, v123")
        e("s_nop 1")
        e("v_permlane32_swap_b32 v123, v124")
        e("v_max_f32 v123, v123, v124")
        if not first:
            e("v_cmp_lt_f32 vcc, s12, v123")
            e("s_cbranch_vccz L_fast_" + name)
            e("v_max_f32 v123, 0, v123")
            e("v_sub_f32 v124, 0, v123")
            e("v_exp_f32 v124, v124")
            e("s_nop 0")
            for r in range(32, 48): e(f"v_mul_f32 v{r}, v{r}, v124")
        for r in range(16, 32): e(f"v_sub_f32 v{r}, v{r}, v123")
        for r in range(48, 80): e(f"v_sub_f32 v{r}, v{r}, v123")
        if not first: e.lab("L_fast_" + name)
        for r in range(48, 80): e(f"v_exp_f32 v{r}, v{r}")
        for q in range(16): e(f"v_cvt_pk_bf16_f32 v{104+q}, v{48+2*q}, v{49+2*q}")
        e("s_waitcnt lgkmcnt(0)")
        e("s_nop 1")
        for f in range(4):
            e(f"v_mfma_f32_32x32x16_bf16 v[32:47], v[{88+4*f}:{91+4*f}], v[{104+4*f}:{107+4*f}], v[32:47]")
    block(True)
    e.lab("L_loop_" + name)
    block(False)
    e("s_add_u32 s11, s11, 1")
    e("s_cmp_lt_u32 s11, 31")
    e("s_cbranch_scc1 L_loop_" + name)
    e("s_nop 7"); e("s_nop 7")
    e("v_mov_b32 v124, v40")
    e("s_nop 1")
    e("v_permlane32_swap_b32 v40, v124")
    e("v_rcp_f32 v40, v40")
    e("s_nop 0")
    for r in range(32, 40): e(f"v_mul_f32 v{r}, v{r}, v40")
    for q in range(4): e(f"v_cvt_pk_bf16_f32 v{48+q}, v{32+2*q}, v{33+2*q}")
    srd(e, 16, 6, WS_O, 2*MB)
    e("v_lshlrev_b32 v11, 10, v10")
    e("v_lshl_add_u32 v11, v8, 3, v11")
    e("s_lshl_b32 s9, s3, 5")
    e("buffer_store_dwordx2 v[48:49], v11, s[16:19], s9 offen")
    e("buffer_store_dwordx2 v[50:51], v11, s[16:19], s9 offen offset:16")
    e.lab("L_end_" + name)
    e("s_endpgm")
    return e.text(), 128, 256, CONST + 256, 512
```

```python
import sys
NAME = "sequential_preLN__softmax_full_mha__mixer_s_mlp__prompt"
MB = 1 << 20
WS_Q, WS_K, WS_VT, WS_O, WS_H, WS_XB, WS_HH, WS_X1, WS_T = 0, 2*MB, 4*MB, 6*MB, 8*MB, 10*MB, 12*MB, 14*MB, 16*MB
KA = dict(x=0, wqkv=8, wo=16, w1=32, w2=40, w3=48, w4=56, out=64, ws=80)

class E:
    def __init__(s): s.l = []
    def __call__(s, t): s.l.append("    " + t)
    def lab(s, t): s.l.append(t + ":")
    def text(s): return "\n".join(s.l) + "\n"

def srd(e, d, base_pair, off, nbytes):
    if off:
        e(f"s_add_u32 s{d}, s{base_pair}, {off:#x}")
        e(f"s_addc_u32 s{d+1}, s{base_pair+1}, 0")
    else:
        e(f"s_mov_b32 s{d}, s{base_pair}")
        e(f"s_mov_b32 s{d+1}, s{base_pair+1}")
    e(f"s_mov_b32 s{d+2}, {nbytes:#x}")
    e(f"s_mov_b32 s{d+3}, 0x00020000")

def kd(name, vgpr, sgpr=96):
    acc = (vgpr + 3) // 4 * 4
    return f""".section .rodata,"a"
.p2align 6
.amdhsa_kernel {name}
  .amdhsa_next_free_vgpr {vgpr}
  .amdhsa_next_free_sgpr {sgpr}
  .amdhsa_accum_offset {acc}
  .amdhsa_group_segment_fixed_size 0
  .amdhsa_kernarg_size 88
  .amdhsa_user_sgpr_count 2
  .amdhsa_user_sgpr_kernarg_segment_ptr 1
  .amdhsa_system_sgpr_workgroup_id_x 1
.end_amdhsa_kernel
.text
"""

XROW = 1024 + 16

def gemm(name, xsrc, xstride, K, mode, wkey, N, epi, swap=False, fb_lo=0, nfb=None):
    e = E()
    NFB = nfb if nfb else (N + 127) // 128
    nks = K // 16
    ksw = [nks // 4 + (1 if w < nks % 4 else 0) for w in range(4)]
    NS = max(ksw)
    uniform_k = (nks % 4 == 0)
    e.lab(name)
    e("s_and_b32 s3, s2, 63")
    e("s_lshr_b32 s4, s2, 6")
    e(f"s_cmp_ge_u32 s4, {NFB}")
    e("s_cbranch_scc1 L_end_" + name)
    if fb_lo: e(f"s_add_u32 s4, s4, {fb_lo}")
    e("s_load_dwordx2 s[6:7], s[0:1], 80")
    e(f"s_load_dwordx2 s[8:9], s[0:1], {KA[wkey]}")
    e(f"s_load_dwordx2 s[10:11], s[0:1], {KA['x']}")
    e(f"s_load_dwordx2 s[12:13], s[0:1], {KA['out']}")
    e("v_lshrrev_b32 v1, 6, v0")
    e("v_and_b32 v2, 63, v0")
    e("v_and_b32 v3, 31, v2")
    e("v_lshrrev_b32 v4, 5, v2")
    e("v_readfirstlane_b32 s5, v1")
    e("s_mov_b32 s40, 0x05040100")
    e("s_mov_b32 s41, 0x07060302")
    e("s_waitcnt lgkmcnt(0)")
    xbytes = 2048 * xstride
    if xsrc[0] == 'ka': srd(e, 16, 10, 0, xbytes)
    else: srd(e, 16, 6, xsrc[1], xbytes)
    srd(e, 20, 8, 0, K * N * 2)
    e("s_lshl_b32 s24, s3, 5")
    if uniform_k:
        e(f"s_mul_i32 s25, s5, {NS}")
    else:
        e(f"s_mul_i32 s25, s5, {nks//4}")
        e(f"s_min_u32 s26, s5, {nks%4}")
        e("s_add_u32 s25, s25, s26")
    e("s_lshl_b32 s26, s4, 8")
    e(f"s_mul_i32 s27, s25, {16*N*2}")
    e("s_add_u32 s26, s26, s27")
    e(f"v_mul_u32_u24 v5, {8*N*2}, v4")
    e("v_lshl_add_u32 v5, v3, 3, v5")
    lds_mode = mode in ('ln1', 'ln2')
    WB = [128, 192]
    XB = [112, 32]
    def wload(ch, buf):
        if not lds_mode:
            for s in range(4):
                ks = ch * 4 + s
                if ks >= NS: break
                r = XB[buf] + 4 * s
                e(f"buffer_load_dwordx4 v[{r}:{r+3}], v12, s[16:19], 0 offen offset:{32*ks}")
        for s in range(4):
            ks = ch * 4 + s
            if ks >= NS: break
            for i in range(8):
                off = (16 * ks + i) * N * 2
                r = WB[buf] + s * 16 + i * 2
                if off < 4096:
                    e(f"buffer_load_dwordx2 v[{r}:{r+1}], v5, s[20:23], s26 offen offset:{off}")
                else:
                    e(f"s_add_u32 s28, s26, {off:#x}")
                    e(f"buffer_load_dwordx2 v[{r}:{r+1}], v5, s[20:23], s28 offen")
    def nload(ch): return (8 if lds_mode else 9) * max(0, min(4, NS - ch * 4))
    nch = (NS + 3) // 4
    if lds_mode:
        e("v_lshrrev_b32 v6, 3, v0")
        e("v_and_b32 v7, 7, v0")
        e("v_add_u32 v8, s24, v6")
        e(f"v_mul_u32_u24 v8, {xstride}, v8")
        e("v_lshl_add_u32 v8, v7, 4, v8")
        for i in range(8):
            e(f"buffer_load_dwordx4 v[{16+4*i}:{19+4*i}], v8, s[16:19], 0 offen offset:{128*i}")
        wload(0, 0)
        e(f"s_waitcnt vmcnt({nload(0)})")
        if nch > 1: wload(1, 1)
        for r in range(32):
            e(f"v_lshlrev_b32 v{48+2*r}, 16, v{16+r}")
            e(f"v_and_b32 v{49+2*r}, 0xffff0000, v{16+r}")
        def ln_pass(first):
            e("v_add_f32 v9, v48, v49")
            for r in range(50, 112): e(f"v_add_f32 v9, v9, v{r}")
            for dpp in ("quad_perm:[1,0,3,2]", "quad_perm:[2,3,0,1]", "row_half_mirror"):
                e("s_nop 1")
                e(f"v_add_f32_dpp v9, v9, v9 {dpp} row_mask:0xf bank_mask:0xf")
            e("v_mul_f32 v9, 0x3b000000, v9")
            for r in range(48, 112): e(f"v_sub_f32 v{r}, v{r}, v9")
            e("v_mul_f32 v10, v48, v48")
            for r in range(49, 112): e(f"v_fmac_f32 v10, v{r}, v{r}")
            for dpp in ("quad_perm:[1,0,3,2]", "quad_perm:[2,3,0,1]", "row_half_mirror"):
                e("s_nop 1")
                e(f"v_add_f32_dpp v10, v10, v10 {dpp} row_mask:0xf bank_mask:0xf")
            e("v_mov_b32 v11, 0x3727c5ac")
            e("v_fmac_f32 v11, 0x3b000000, v10")
            e("v_rsq_f32 v11, v11")
            e("s_nop 0")
            for r in range(48, 112): e(f"v_mul_f32 v{r}, v{r}, v11")
        ln_pass(True)
        for r in range(32):
            e(f"v_cvt_pk_bf16_f32 v{16+r}, v{48+2*r}, v{49+2*r}")
        if mode == 'ln2':
            e("s_cmp_lg_u32 s4, 0")
            e("s_cbranch_scc1 L_noxb_" + name)
            srd(e, 28, 6, WS_XB, 2*MB)
            for i in range(8):
                e(f"buffer_store_dwordx4 v[{16+4*i}:{19+4*i}], v8, s[28:31], 0 offen offset:{128*i}")
            e.lab("L_noxb_" + name)
            for r in range(32):
                e(f"v_lshlrev_b32 v{48+2*r}, 16, v{16+r}")
                e(f"v_and_b32 v{49+2*r}, 0xffff0000, v{16+r}")
            ln_pass(False)
            for r in range(32):
                e(f"v_cvt_pk_bf16_f32 v{16+r}, v{48+2*r}, v{49+2*r}")
        e(f"v_mul_u32_u24 v9, {XROW}, v6")
        e("v_lshl_add_u32 v9, v7, 4, v9")
        for i in range(8):
            e(f"ds_write_b128 v9, v[{16+4*i}:{19+4*i}] offset:{128*i}")
        e("s_waitcnt lgkmcnt(0)")
        e("s_barrier")
        e(f"v_mul_u32_u24 v9, {XROW}, v3")
        e("v_lshl_add_u32 v9, v4, 4, v9")
        e("s_lshl_b32 s27, s25, 5")
        e("v_add_u32 v9, s27, v9")
    else:
        e("v_add_u32 v8, s24, v3")
        e(f"v_mul_u32_u24 v8, {xstride}, v8")
        e("v_lshl_add_u32 v8, v4, 4, v8")
        e("s_lshl_b32 s27, s25, 5")
        e("v_add_u32 v12, s27, v8")
        if mode == 'shift':
            e("s_mov_b32 s27, 0xfffffc00")
            e("s_cmp_eq_u32 s5, 1"); e("s_cselect_b32 s27, 1024, s27")
            e("s_cmp_eq_u32 s5, 2"); e("s_cselect_b32 s27, 0xfffff800, s27")
            e("s_cmp_eq_u32 s5, 3"); e("s_cselect_b32 s27, 2048, s27")
            e("v_add_u32 v12, s27, v12")
        wload(0, 0)
        if nch > 1: wload(1, 1)
    for r in range(64): e(f"v_mov_b32 v{48+r}, 0")
    vm_after = 0
    for ks in range(NS):
        ch, s = ks // 4, ks % 4
        buf = ch % 2
        xr = 40 + 4 * (ks % 2) if lds_mode else XB[buf] + 4 * s
        skip = (not uniform_k) and ks >= min(ksw)
        if skip:
            e(f"s_cmp_ge_u32 s5, {nks%4}")
            e(f"s_cbranch_scc1 L_skip_{name}")
        if lds_mode: e(f"ds_read_b128 v[{xr}:{xr+3}], v9 offset:{32*ks}")
        if s == 0:
            later = 0
            if ch + 1 < nch: later += nload(ch + 1)
            e(f"s_waitcnt vmcnt({min(later,63)})")
        wb = WB[buf] + s * 16
        for j in range(4):
            for q in range(4):
                sel = "s40" if j % 2 == 0 else "s41"
                e(f"v_perm_b32 v{16+4*j+q}, v{wb+(2*q+1)*2+j//2}, v{wb+(2*q)*2+j//2}, {sel}")
        if s == 3 and ch + 2 < nch:
            pass
        e("s_waitcnt lgkmcnt(0)" if lds_mode else "s_nop 1")
        for j in range(4):
            a, b = f"v[{16+4*j}:{19+4*j}]", f"v[{xr}:{xr+3}]"
            if swap: a, b = b, a
            e(f"v_mfma_f32_32x32x16_bf16 v[{48+16*j}:{63+16*j}], {a}, {b}, v[{48+16*j}:{63+16*j}]")
        if s == 3 and ch + 2 < nch:
            wload(ch + 2, buf)
    if not uniform_k: e.lab("L_skip_" + name)
    e("s_nop 7"); e("s_nop 7")
    e("s_waitcnt vmcnt(0)")
    e("s_barrier")
    e("v_lshlrev_b32 v9, 4, v2")
    e("s_lshl_b32 s27, s5, 12")
    e("v_add_u32 v10, s27, v9")
    for q in range(4):
        for j in range(4):
            r = 48 + 16 * j + 4 * q
            e(f"ds_write_b128 v10, v[{r}:{r+3}] offset:{q*16384 + j*1024}")
    e("s_waitcnt lgkmcnt(0)")
    e("s_barrier")
    e("s_lshl_b32 s27, s5, 14")
    e("v_add_u32 v10, s27, v9")
    for w in range(4):
        for j in range(4):
            e(f"ds_read_b128 v[{128+16*w+4*j}:{131+16*w+4*j}], v10 offset:{w*4096 + j*1024}")
    e("s_waitcnt lgkmcnt(0)")
    for r in range(16):
        e(f"v_add_f32 v{48+r}, v{128+r}, v{144+r}")
        e(f"v_add_f32 v{64+r}, v{160+r}, v{176+r}")
    for r in range(16): e(f"v_add_f32 v{48+r}, v{48+r}, v{64+r}")
    R = lambda f: 48 + 4 * (f % 4) + f // 4
    if not swap:
        e("v_add_u32 v8, s24, v3")
        e("s_lshl_b32 s27, s4, 8")
        e("s_lshl_b32 s28, s5, 6")
        e("s_add_u32 s27, s27, s28")
        e("v_lshlrev_b32 v9, 5, v4")
        e("v_add_u32 v9, s27, v9")
    def row_addr(stride):
        e(f"v_mul_u32_u24 v10, {stride}, v8")
        e("v_add_u32 v10, v10, v9")
    def pack_store(sr):
        for q in range(8): e(f"v_cvt_pk_bf16_f32 v{16+q}, v{R(2*q)}, v{R(2*q+1)}")
        e(f"buffer_store_dwordx4 v[16:19], v10, s[{sr}:{sr+3}], 0 offen")
        e(f"buffer_store_dwordx4 v[20:23], v10, s[{sr}:{sr+3}], 0 offen offset:16")
    def add_bf16_row(sr, base):
        e(f"buffer_load_dwordx4 v[{base}:{base+3}], v10, s[{sr}:{sr+3}], 0 offen")
        e(f"buffer_load_dwordx4 v[{base+4}:{base+7}], v10, s[{sr}:{sr+3}], 0 offen offset:16")
        e("s_waitcnt vmcnt(0)")
        for q in range(8):
            e(f"v_lshlrev_b32 v11, 16, v{base+q}")
            e(f"v_add_f32 v{R(2*q)}, v{R(2*q)}, v11")
            e(f"v_and_b32 v11, 0xffff0000, v{base+q}")
            e(f"v_add_f32 v{R(2*q+1)}, v{R(2*q+1)}, v11")
    def gelu():
        for r in range(48, 64):
            e(f"v_mul_f32 v16, v{r}, v{r}")
            e("v_fma_f32 v16, v16, s42, 1.0")
            e(f"v_mul_f32 v16, v16, v{r}")
            e("v_mul_f32 v16, s43, v16")
            e("v_exp_f32 v16, v16")
            e("s_nop 0")
            e("v_add_f32 v16, 1.0, v16")
            e("v_rcp_f32 v16, v16")
            e("s_nop 0")
            e(f"v_mul_f32 v{r}, v{r}, v16")
    if epi == 'qk':
        e("s_cmp_lt_u32 s4, 4")
        e("s_cselect_b32 s28, 0x3eb8aa3b, 1.0")
        for r in range(48, 64): e(f"v_mul_f32 v{r}, s28, v{r}")
        srd(e, 28, 6, WS_Q, 4*MB)
        e("s_lshl_b32 s27, s4, 19")
        e("s_lshl_b32 s32, s5, 17")
        e("s_add_u32 s27, s27, s32")
        e("v_lshlrev_b32 v10, 16, v4")
        e("v_lshl_add_u32 v10, v8, 5, v10")
        e("v_add_u32 v10, s27, v10")
        pack_store(28)
    elif epi == 'v':
        srd(e, 28, 6, WS_VT, 2*MB)
        e("s_sub_u32 s27, s4, 8")
        e("s_lshl_b32 s27, s27, 19")
        e("s_lshl_b32 s32, s24, 1")
        e("s_add_u32 s27, s27, s32")
        e("s_lshr_b32 s32, s5, 1"); e("s_lshl_b32 s32, s32, 5")
        e("s_add_u32 s27, s27, s32")
        e("s_and_b32 s32, s5, 1"); e("s_lshl_b32 s32, s32, 3")
        e("s_add_u32 s27, s27, s32")
        e("v_lshlrev_b32 v10, 14, v3")
        e("v_lshl_add_u32 v10, v4, 4, v10")
        e("v_add_u32 v10, s27, v10")
        for j in range(4):
            e(f"v_cvt_pk_bf16_f32 v16, v{48+4*j}, v{49+4*j}")
            e(f"v_cvt_pk_bf16_f32 v17, v{50+4*j}, v{51+4*j}")
            e(f"s_mov_b32 s33, {j*4096}")
            e(f"buffer_store_dwordx2 v[16:17], v10, s[28:31], s33 offen")
            e("s_nop 1")
    elif epi == 'res':
        row_addr(1024)
        srd(e, 28, 10, 0, 2*MB)
        add_bf16_row(28, 24)
        srd(e, 28, 6, WS_H, 2*MB)
        pack_store(28)
    elif epi == 'gelu':
        e("s_mov_b32 s42, 0x3d372713")
        e("s_mov_b32 s43, 0xc0135761")
        gelu()
        stride = 2 * N
        row_addr(stride)
        srd(e, 28, 6, WS_HH if N == 512 else WS_T, 2048 * stride)
        if N % 128:
            e(f"s_lshl_b32 s27, s4, 7"); e("s_lshl_b32 s32, s5, 5"); e("s_add_u32 s27, s27, s32")
            e(f"s_cmp_ge_u32 s27, {N}")
            e("s_cbranch_scc1 L_end_" + name)
        pack_store(28)
    elif epi == 'x1':
        row_addr(1024)
        srd(e, 28, 6, WS_XB, 2*MB)
        add_bf16_row(28, 24)
        srd(e, 28, 6, WS_X1, 2*MB)
        pack_store(28)
    elif epi == 'out':
        row_addr(1024)
        srd(e, 28, 6, WS_X1, 2*MB)
        add_bf16_row(28, 24)
        srd(e, 28, 6, WS_H, 2*MB)
        add_bf16_row(28, 24)
        srd(e, 28, 12, 0, 2*MB)
        pack_store(28)
    e.lab("L_end_" + name)
    e("s_endpgm")
    return e.text(), 256, 64 * NFB, 65536

if __name__ == "__main__":
    from attn import attn
    kernels = []
    kernels.append(("k1qk_kernel",) + gemm("k1qk_kernel", ('ka','x'), 1024, 512, 'ln1', 'wqkv', 1536, 'qk', nfb=8))
    kernels.append(("k1v_kernel",) + gemm("k1v_kernel", ('ka','x'), 1024, 512, 'ln1', 'wqkv', 1536, 'v', swap=True, fb_lo=8, nfb=4))
    kernels.append(("k2attn_kernel",) + attn("k2attn_kernel"))
    kernels.append(("k3_kernel",) + gemm("k3_kernel", ('ws',WS_O), 1024, 512, 'plain', 'wo', 512, 'res'))
    kernels.append(("k4_kernel",) + gemm("k4_kernel", ('ws',WS_H), 1024, 512, 'ln2', 'w1', 512, 'gelu'))
    kernels.append(("k5_kernel",) + gemm("k5_kernel", ('ws',WS_HH), 1024, 512, 'shift', 'w2', 512, 'x1'))
    kernels.append(("k6_kernel",) + gemm("k6_kernel", ('ws',WS_X1), 1024, 512, 'ln1', 'w3', 1376, 'gelu'))
    kernels.append(("k7_kernel",) + gemm("k7_kernel", ('ws',WS_T), 2752, 1376, 'plain', 'w4', 512, 'out'))
    out = ["; generated by gen/gen.py"]
    for n, _, _, g, lds, *rest in kernels:
        blk = rest[0] if rest else 256
        out.append(f"; @launch kernel={n} grid=({g},1,1) block=({blk},1,1) lds={lds}")
    out.append('.amdgcn_target "amdgcn-amd-amdhsa--gfx950"\n.text')
    for n, body, vg, g, lds, *rest in kernels:
        out.append(f".globl {n}\n.p2align 8\n.type {n},@function\n" + body + kd(n, vg))
    open(f"cdna_kernels/{NAME}.s", "w").write("\n".join(out))
```

```python
import sys
NAME = "sequential_preLN__softmax_full_mha__mixer_s_mlp__prompt"
MB = 1 << 20
WS_Q, WS_K, WS_VT, WS_O, WS_H, WS_XB, WS_HH, WS_X1, WS_T = 0, 2*MB, 4*MB, 6*MB, 8*MB, 10*MB, 12*MB, 14*MB, 16*MB
KA = dict(x=0, wqkv=8, wo=16, w1=32, w2=40, w3=48, w4=56, out=64, ws=80)

class E:
    def __init__(s): s.l = []
    def __call__(s, t): s.l.append("    " + t)
    def lab(s, t): s.l.append(t + ":")
    def text(s): return "\n".join(s.l) + "\n"

def srd(e, d, base_pair, off, nbytes):
    if off:
        e(f"s_add_u32 s{d}, s{base_pair}, {off:#x}")
        e(f"s_addc_u32 s{d+1}, s{base_pair+1}, 0")
    else:
        e(f"s_mov_b32 s{d}, s{base_pair}")
        e(f"s_mov_b32 s{d+1}, s{base_pair+1}")
    e(f"s_mov_b32 s{d+2}, {nbytes:#x}")
    e(f"s_mov_b32 s{d+3}, 0x00020000")

def kd(name, vgpr, sgpr=96):
    acc = (vgpr + 3) // 4 * 4
    if vgpr == 256: vgpr = 272
    return f""".section .rodata,"a"
.p2align 6
.amdhsa_kernel {name}
  .amdhsa_next_free_vgpr {vgpr}
  .amdhsa_next_free_sgpr {sgpr}
  .amdhsa_accum_offset {acc}
  .amdhsa_group_segment_fixed_size 0
  .amdhsa_kernarg_size 88
  .amdhsa_user_sgpr_count 2
  .amdhsa_user_sgpr_kernarg_segment_ptr 1
  .amdhsa_system_sgpr_workgroup_id_x 1
.end_amdhsa_kernel
.text
"""

XROW = 1024 + 16

def gemm(name, xsrc, xstride, K, mode, wkey, N, epi, swap=False, fb_lo=0, nfb=None):
    e = E()
    NFB = nfb if nfb else (N + 127) // 128
    nks = K // 16
    ksw = [nks // 4 + (1 if w < nks % 4 else 0) for w in range(4)]
    NS = max(ksw)
    uniform_k = (nks % 4 == 0)
    e.lab(name)
    e("s_and_b32 s3, s2, 63")
    e("s_lshr_b32 s4, s2, 6")
    e(f"s_cmp_ge_u32 s4, {NFB}")
    e("s_cbranch_scc1 L_end_" + name)
    if fb_lo: e(f"s_add_u32 s4, s4, {fb_lo}")
    e("s_load_dwordx2 s[6:7], s[0:1], 80")
    e(f"s_load_dwordx2 s[8:9], s[0:1], {KA[wkey]}")
    e(f"s_load_dwordx2 s[10:11], s[0:1], {KA['x']}")
    e(f"s_load_dwordx2 s[12:13], s[0:1], {KA['out']}")
    e("v_lshrrev_b32 v1, 6, v0")
    e("v_and_b32 v2, 63, v0")
    e("v_and_b32 v3, 31, v2")
    e("v_lshrrev_b32 v4, 5, v2")
    e("v_readfirstlane_b32 s5, v1")
    e("s_mov_b32 s40, 0x05040100")
    e("s_mov_b32 s41, 0x07060302")
    e("s_waitcnt lgkmcnt(0)")
    xbytes = 2048 * xstride
    if xsrc[0] == 'ka': srd(e, 16, 10, 0, xbytes)
    else: srd(e, 16, 6, xsrc[1], xbytes)
    srd(e, 20, 8, 0, K * N * 2)
    e("s_lshl_b32 s24, s3, 5")
    if uniform_k:
        e(f"s_mul_i32 s25, s5, {NS}")
    else:
        e(f"s_mul_i32 s25, s5, {nks//4}")
        e(f"s_min_u32 s26, s5, {nks%4}")
        e("s_add_u32 s25, s25, s26")
    e("s_lshl_b32 s26, s4, 8")
    e(f"s_mul_i32 s27, s25, {16*N*2}")
    e("s_add_u32 s26, s26, s27")
    e(f"v_mul_u32_u24 v5, {8*N*2}, v4")
    e("v_lshl_add_u32 v5, v3, 3, v5")
    lds_mode = mode in ('ln1', 'ln2')
    pre_src = {'res': [(10, 0)], 'x1': [(6, WS_XB)], 'out': [(6, WS_X1), (6, WS_H)]}.get(epi, [])
    if pre_src:
        e("v_add_u32 v13, s24, v3")
        e("v_lshlrev_b32 v13, 10, v13")
        e("v_lshl_add_u32 v13, v4, 5, v13")
        e("s_lshl_b32 s27, s4, 8"); e("s_lshl_b32 s28, s5, 6"); e("s_add_u32 s27, s27, s28")
        for n_, (bp, off) in enumerate(pre_src):
            srd(e, 28, bp, off, 2*MB)
            e(f"buffer_load_dwordx4 a[{8*n_}:{8*n_+3}], v13, s[28:31], s27 offen")
            e(f"buffer_load_dwordx4 a[{8*n_+4}:{8*n_+7}], v13, s[28:31], s27 offen offset:16")
    WB = [128, 192]
    XB = [112, 32]
    def wload(ch, buf):
        if not lds_mode:
            for s in range(4):
                ks = ch * 4 + s
                if ks >= NS: break
                r = XB[buf] + 4 * s
                e(f"buffer_load_dwordx4 v[{r}:{r+3}], v12, s[16:19], 0 offen offset:{32*ks}")
        for s in range(4):
            ks = ch * 4 + s
            if ks >= NS: break
            for i in range(8):
                off = (16 * ks + i) * N * 2
                r = WB[buf] + s * 16 + i * 2
                if off < 4096:
                    e(f"buffer_load_dwordx2 v[{r}:{r+1}], v5, s[20:23], s26 offen offset:{off}")
                else:
                    e(f"s_add_u32 s28, s26, {off:#x}")
                    e(f"buffer_load_dwordx2 v[{r}:{r+1}], v5, s[20:23], s28 offen")
    def nload_(ch): return (8 if lds_mode else 9) * max(0, min(4, NS - ch * 4))
    nload = nload_
    nch = (NS + 3) // 4
    if lds_mode:
        e("v_lshrrev_b32 v6, 3, v0")
        e("v_and_b32 v7, 7, v0")
        e("v_add_u32 v8, s24, v6")
        e(f"v_mul_u32_u24 v8, {xstride}, v8")
        e("v_lshl_add_u32 v8, v7, 4, v8")
        for i in range(8):
            e(f"buffer_load_dwordx4 v[{16+4*i}:{19+4*i}], v8, s[16:19], 0 offen offset:{128*i}")
        wload(0, 0)
        e(f"s_waitcnt vmcnt({nload(0)})")
        if nch > 1: wload(1, 1)
        for r in range(32):
            e(f"v_lshlrev_b32 v{48+2*r}, 16, v{16+r}")
            e(f"v_and_b32 v{49+2*r}, 0xffff0000, v{16+r}")
        def ln_pass(first):
            e("v_add_f32 v9, v48, v49")
            for r in range(50, 112): e(f"v_add_f32 v9, v9, v{r}")
            for dpp in ("quad_perm:[1,0,3,2]", "quad_perm:[2,3,0,1]", "row_half_mirror"):
                e("s_nop 1")
                e(f"v_add_f32_dpp v9, v9, v9 {dpp} row_mask:0xf bank_mask:0xf")
            e("v_mul_f32 v9, 0x3b000000, v9")
            for r in range(48, 112): e(f"v_sub_f32 v{r}, v{r}, v9")
            e("v_mul_f32 v10, v48, v48")
            for r in range(49, 112): e(f"v_fmac_f32 v10, v{r}, v{r}")
            for dpp in ("quad_perm:[1,0,3,2]", "quad_perm:[2,3,0,1]", "row_half_mirror"):
                e("s_nop 1")
                e(f"v_add_f32_dpp v10, v10, v10 {dpp} row_mask:0xf bank_mask:0xf")
            e("v_mov_b32 v11, 0x3727c5ac")
            e("v_fmac_f32 v11, 0x3b000000, v10")
            e("v_rsq_f32 v11, v11")
            e("s_nop 0")
            for r in range(48, 112): e(f"v_mul_f32 v{r}, v{r}, v11")
        ln_pass(True)
        for r in range(32):
            e(f"v_cvt_pk_bf16_f32 v{16+r}, v{48+2*r}, v{49+2*r}")
        if mode == 'ln2':
            e("s_cmp_lg_u32 s4, 0")
            e("s_cbranch_scc1 L_noxb_" + name)
            srd(e, 28, 6, WS_XB, 2*MB)
            for i in range(8):
                e(f"buffer_store_dwordx4 v[{16+4*i}:{19+4*i}], v8, s[28:31], 0 offen offset:{128*i}")
            e.lab("L_noxb_" + name)
            for r in range(32):
                e(f"v_lshlrev_b32 v{48+2*r}, 16, v{16+r}")
                e(f"v_and_b32 v{49+2*r}, 0xffff0000, v{16+r}")
            ln_pass(False)
            for r in range(32):
                e(f"v_cvt_pk_bf16_f32 v{16+r}, v{48+2*r}, v{49+2*r}")
        e(f"v_mul_u32_u24 v9, {XROW}, v6")
        e("v_lshl_add_u32 v9, v7, 4, v9")
        for i in range(8):
            e(f"ds_write_b128 v9, v[{16+4*i}:{19+4*i}] offset:{128*i}")
        e("s_waitcnt lgkmcnt(0)")
        e("s_barrier")
        e(f"v_mul_u32_u24 v9, {XROW}, v3")
        e("v_lshl_add_u32 v9, v4, 4, v9")
        e("s_lshl_b32 s27, s25, 5")
        e("v_add_u32 v9, s27, v9")
    else:
        e("v_add_u32 v8, s24, v3")
        e(f"v_mul_u32_u24 v8, {xstride}, v8")
        e("v_lshl_add_u32 v8, v4, 4, v8")
        e("s_lshl_b32 s27, s25, 5")
        e("v_add_u32 v12, s27, v8")
        if mode == 'shift':
            e("s_mov_b32 s27, 0xfffffc00")
            e("s_cmp_eq_u32 s5, 1"); e("s_cselect_b32 s27, 1024, s27")
            e("s_cmp_eq_u32 s5, 2"); e("s_cselect_b32 s27, 0xfffff800, s27")
            e("s_cmp_eq_u32 s5, 3"); e("s_cselect_b32 s27, 2048, s27")
            e("v_add_u32 v12, s27, v12")
        wload(0, 0)
        if nch > 1: wload(1, 1)
    for r in range(64): e(f"v_mov_b32 v{48+r}, 0")
    vm_after = 0
    for ks in range(NS):
        ch, s = ks // 4, ks % 4
        buf = ch % 2
        xr = 40 + 4 * (ks % 2) if lds_mode else XB[buf] + 4 * s
        skip = (not uniform_k) and ks >= min(ksw)
        if skip:
            e(f"s_cmp_ge_u32 s5, {nks%4}")
            e(f"s_cbranch_scc1 L_skip_{name}")
        if lds_mode: e(f"ds_read_b128 v[{xr}:{xr+3}], v9 offset:{32*ks}")
        if s == 0:
            later = 0
            if ch + 1 < nch: later += nload(ch + 1)
            e(f"s_waitcnt vmcnt({min(later,63)})")
        wb = WB[buf] + s * 16
        for j in range(4):
            for q in range(4):
                sel = "s40" if j % 2 == 0 else "s41"
                e(f"v_perm_b32 v{16+4*j+q}, v{wb+(2*q+1)*2+j//2}, v{wb+(2*q)*2+j//2}, {sel}")
        if s == 3 and ch + 2 < nch:
            pass
        e("s_waitcnt lgkmcnt(0)" if lds_mode else "s_nop 1")
        for j in range(4):
            a, b = f"v[{16+4*j}:{19+4*j}]", f"v[{xr}:{xr+3}]"
            if swap: a, b = b, a
            e(f"v_mfma_f32_32x32x16_bf16 v[{48+16*j}:{63+16*j}], {a}, {b}, v[{48+16*j}:{63+16*j}]")
        if s == 3 and ch + 2 < nch:
            wload(ch + 2, buf)
    if not uniform_k: e.lab("L_skip_" + name)
    e("s_nop 7"); e("s_nop 7")
    e("s_waitcnt vmcnt(0)")
    e("s_barrier")
    e("v_lshlrev_b32 v9, 4, v2")
    e("s_lshl_b32 s27, s5, 12")
    e("v_add_u32 v10, s27, v9")
    for q in range(4):
        for j in range(4):
            r = 48 + 16 * j + 4 * q
            e(f"ds_write_b128 v10, v[{r}:{r+3}] offset:{q*16384 + j*1024}")
    e("s_waitcnt lgkmcnt(0)")
    e("s_barrier")
    e("s_lshl_b32 s27, s5, 14")
    e("v_add_u32 v10, s27, v9")
    for w in range(4):
        for j in range(4):
            e(f"ds_read_b128 v[{128+16*w+4*j}:{131+16*w+4*j}], v10 offset:{w*4096 + j*1024}")
    e("s_waitcnt lgkmcnt(0)")
    for r in range(16):
        e(f"v_add_f32 v{48+r}, v{128+r}, v{144+r}")
        e(f"v_add_f32 v{64+r}, v{160+r}, v{176+r}")
    for r in range(16): e(f"v_add_f32 v{48+r}, v{48+r}, v{64+r}")
    R = lambda f: 48 + 4 * (f % 4) + f // 4
    if not swap:
        e("v_add_u32 v8, s24, v3")
        e("s_lshl_b32 s27, s4, 8")
        e("s_lshl_b32 s28, s5, 6")
        e("s_add_u32 s27, s27, s28")
        e("v_lshlrev_b32 v9, 5, v4")
        e("v_add_u32 v9, s27, v9")
    def row_addr(stride):
        e(f"v_mul_u32_u24 v10, {stride}, v8")
        e("v_add_u32 v10, v10, v9")
    def pack_store(sr):
        for q in range(8): e(f"v_cvt_pk_bf16_f32 v{16+q}, v{R(2*q)}, v{R(2*q+1)}")
        e(f"buffer_store_dwordx4 v[16:19], v10, s[{sr}:{sr+3}], 0 offen")
        e(f"buffer_store_dwordx4 v[20:23], v10, s[{sr}:{sr+3}], 0 offen offset:16")
    def add_bf16_row(sr, base):
        for q in range(8): e(f"v_accvgpr_read_b32 v{base+q}, a{sr+q}")
        for q in range(8):
            e(f"v_lshlrev_b32 v11, 16, v{base+q}")
            e(f"v_add_f32 v{R(2*q)}, v{R(2*q)}, v11")
            e(f"v_and_b32 v11, 0xffff0000, v{base+q}")
            e(f"v_add_f32 v{R(2*q+1)}, v{R(2*q+1)}, v11")
    def gelu():
        for r in range(48, 64):
            e(f"v_mul_f32 v16, v{r}, v{r}")
            e("v_fma_f32 v16, v16, s42, 1.0")
            e(f"v_mul_f32 v16, v16, v{r}")
            e("v_mul_f32 v16, s43, v16")
            e("v_exp_f32 v16, v16")
            e("s_nop 0")
            e("v_add_f32 v16, 1.0, v16")
            e("v_rcp_f32 v16, v16")
            e("s_nop 0")
            e(f"v_mul_f32 v{r}, v{r}, v16")
    if epi == 'qk':
        e("s_cmp_lt_u32 s4, 4")
        e("s_cselect_b32 s28, 0x3eb8aa3b, 1.0")
        for r in range(48, 64): e(f"v_mul_f32 v{r}, s28, v{r}")
        srd(e, 28, 6, WS_Q, 4*MB)
        e("s_lshl_b32 s27, s4, 19")
        e("s_lshl_b32 s32, s5, 17")
        e("s_add_u32 s27, s27, s32")
        e("v_lshlrev_b32 v10, 16, v4")
        e("v_lshl_add_u32 v10, v8, 5, v10")
        e("v_add_u32 v10, s27, v10")
        pack_store(28)
    elif epi == 'v':
        srd(e, 28, 6, WS_VT, 2*MB)
        e("s_sub_u32 s27, s4, 8")
        e("s_lshl_b32 s27, s27, 19")
        e("s_lshl_b32 s32, s24, 1")
        e("s_add_u32 s27, s27, s32")
        e("s_lshr_b32 s32, s5, 1"); e("s_lshl_b32 s32, s32, 5")
        e("s_add_u32 s27, s27, s32")
        e("s_and_b32 s32, s5, 1"); e("s_lshl_b32 s32, s32, 3")
        e("s_add_u32 s27, s27, s32")
        e("v_lshlrev_b32 v10, 14, v3")
        e("v_lshl_add_u32 v10, v4, 4, v10")
        e("v_add_u32 v10, s27, v10")
        for j in range(4):
            e(f"v_cvt_pk_bf16_f32 v16, v{48+4*j}, v{49+4*j}")
            e(f"v_cvt_pk_bf16_f32 v17, v{50+4*j}, v{51+4*j}")
            e(f"s_mov_b32 s33, {j*4096}")
            e(f"buffer_store_dwordx2 v[16:17], v10, s[28:31], s33 offen")
            e("s_nop 1")
    elif epi == 'res':
        row_addr(1024)
        add_bf16_row(0, 24)
        srd(e, 28, 6, WS_H, 2*MB)
        pack_store(28)
    elif epi == 'gelu':
        e("s_mov_b32 s42, 0x3d372713")
        e("s_mov_b32 s43, 0xc0135761")
        gelu()
        stride = 2 * N
        row_addr(stride)
        srd(e, 28, 6, WS_HH if N == 512 else WS_T, 2048 * stride)
        if N % 128:
            e(f"s_lshl_b32 s27, s4, 7"); e("s_lshl_b32 s32, s5, 5"); e("s_add_u32 s27, s27, s32")
            e(f"s_cmp_ge_u32 s27, {N}")
            e("s_cbranch_scc1 L_end_" + name)
        pack_store(28)
    elif epi == 'x1':
        row_addr(1024)
        add_bf16_row(0, 24)
        srd(e, 28, 6, WS_X1, 2*MB)
        pack_store(28)
    elif epi == 'out':
        row_addr(1024)
        add_bf16_row(0, 24)
        add_bf16_row(8, 24)
        srd(e, 28, 12, 0, 2*MB)
        pack_store(28)
    e.lab("L_end_" + name)
    e("s_endpgm")
    return e.text(), 256, 64 * NFB, 65536

if __name__ == "__main__":
    from attn import attn
    kernels = []
    qk = gemm("k1qk", ('ka','x'), 1024, 512, 'ln1', 'wqkv', 1536, 'qk', nfb=8)
    vv = gemm("k1v", ('ka','x'), 1024, 512, 'ln1', 'wqkv', 1536, 'v', swap=True, fb_lo=8, nfb=4)
    pre = "k1_kernel:\n    s_cmp_lt_u32 s2, 512\n    s_cbranch_scc1 k1qk\n    s_sub_u32 s2, s2, 512\n    s_branch k1v\n"
    kernels.append(("k1_kernel", pre + qk[0] + vv[0], 256, 768, 65536))
    kernels.append(("k2attn_kernel",) + attn("k2attn_kernel"))
    kernels.append(("k3_kernel",) + gemm("k3_kernel", ('ws',WS_O), 1024, 512, 'plain', 'wo', 512, 'res'))
    kernels.append(("k4_kernel",) + gemm("k4_kernel", ('ws',WS_H), 1024, 512, 'ln2', 'w1', 512, 'gelu'))
    kernels.append(("k5_kernel",) + gemm("k5_kernel", ('ws',WS_HH), 1024, 512, 'shift', 'w2', 512, 'x1'))
    kernels.append(("k6_kernel",) + gemm("k6_kernel", ('ws',WS_X1), 1024, 512, 'ln1', 'w3', 1376, 'gelu'))
    kernels.append(("k7_kernel",) + gemm("k7_kernel", ('ws',WS_T), 2752, 1376, 'plain', 'w4', 512, 'out'))
    out = ["; generated by gen/gen.py"]
    for n, _, _, g, lds, *rest in kernels:
        blk = rest[0] if rest else 256
        out.append(f"; @launch kernel={n} grid=({g},1,1) block=({blk},1,1) lds={lds}")
    out.append('.amdgcn_target "amdgcn-amd-amdhsa--gfx950"\n.text')
    for n, body, vg, g, lds, *rest in kernels:
        out.append(f".globl {n}\n.p2align 8\n.type {n},@function\n" + body + kd(n, vg))
    open(f"cdna_kernels/{NAME}.s", "w").write("\n".join(out))
```

```python
import sys
NAME = "sequential_preLN__softmax_full_mha__mixer_s_mlp__prompt"
MB = 1 << 20
WS_Q, WS_K, WS_VT, WS_O, WS_H, WS_XB, WS_HH, WS_X1, WS_T = 0, 2*MB, 4*MB, 6*MB, 8*MB, 10*MB, 12*MB, 14*MB, 16*MB
KA = dict(x=0, wqkv=8, wo=16, w1=32, w2=40, w3=48, w4=56, out=64, ws=80)

class E:
    def __init__(s): s.l = []
    def __call__(s, t): s.l.append("    " + t)
    def lab(s, t): s.l.append(t + ":")
    def text(s): return "\n".join(s.l) + "\n"

def srd(e, d, base_pair, off, nbytes):
    if off:
        e(f"s_add_u32 s{d}, s{base_pair}, {off:#x}")
        e(f"s_addc_u32 s{d+1}, s{base_pair+1}, 0")
    else:
        e(f"s_mov_b32 s{d}, s{base_pair}")
        e(f"s_mov_b32 s{d+1}, s{base_pair+1}")
    e(f"s_mov_b32 s{d+2}, {nbytes:#x}")
    e(f"s_mov_b32 s{d+3}, 0x00020000")

def kd(name, vgpr, sgpr=96):
    acc = (vgpr + 3) // 4 * 4
    return f""".section .rodata,"a"
.p2align 6
.amdhsa_kernel {name}
  .amdhsa_next_free_vgpr {vgpr}
  .amdhsa_next_free_sgpr {sgpr}
  .amdhsa_accum_offset {acc}
  .amdhsa_group_segment_fixed_size 0
  .amdhsa_kernarg_size 88
  .amdhsa_user_sgpr_count 2
  .amdhsa_user_sgpr_kernarg_segment_ptr 1
  .amdhsa_system_sgpr_workgroup_id_x 1
.end_amdhsa_kernel
.text
"""

XROW = 1024 + 16

def gemm(name, xsrc, xstride, K, mode, wkey, N, epi, swap=False, fb_lo=0, nfb=None):
    e = E()
    NFB = nfb if nfb else (N + 127) // 128
    nks = K // 16
    ksw = [nks // 4 + (1 if w < nks % 4 else 0) for w in range(4)]
    NS = max(ksw)
    uniform_k = (nks % 4 == 0)
    e.lab(name)
    e("s_and_b32 s3, s2, 63")
    e("s_lshr_b32 s4, s2, 6")
    e(f"s_cmp_ge_u32 s4, {NFB}")
    e("s_cbranch_scc1 L_end_" + name)
    if fb_lo: e(f"s_add_u32 s4, s4, {fb_lo}")
    e("s_load_dwordx2 s[6:7], s[0:1], 80")
    e(f"s_load_dwordx2 s[8:9], s[0:1], {KA[wkey]}")
    e(f"s_load_dwordx2 s[10:11], s[0:1], {KA['x']}")
    e(f"s_load_dwordx2 s[12:13], s[0:1], {KA['out']}")
    e("v_lshrrev_b32 v1, 6, v0")
    e("v_and_b32 v2, 63, v0")
    e("v_and_b32 v3, 31, v2")
    e("v_lshrrev_b32 v4, 5, v2")
    e("v_readfirstlane_b32 s5, v1")
    e("s_mov_b32 s40, 0x05040100")
    e("s_mov_b32 s41, 0x07060302")
    e("s_waitcnt lgkmcnt(0)")
    xbytes = 2048 * xstride
    if xsrc[0] == 'ka': srd(e, 16, 10, 0, xbytes)
    else: srd(e, 16, 6, xsrc[1], xbytes)
    srd(e, 20, 8, 0, K * N * 2)
    e("s_lshl_b32 s24, s3, 5")
    if uniform_k:
        e(f"s_mul_i32 s25, s5, {NS}")
    else:
        e(f"s_mul_i32 s25, s5, {nks//4}")
        e(f"s_min_u32 s26, s5, {nks%4}")
        e("s_add_u32 s25, s25, s26")
    e("s_lshl_b32 s26, s4, 8")
    e(f"s_mul_i32 s27, s25, {16*N*2}")
    e("s_add_u32 s26, s26, s27")
    e(f"v_mul_u32_u24 v5, {8*N*2}, v4")
    e("v_lshl_add_u32 v5, v3, 3, v5")
    lds_mode = mode in ('ln1', 'ln2')
    pre_src = [] and {'res': [(10, 0)], 'x1': [(6, WS_XB)], 'out': [(6, WS_X1), (6, WS_H)]}.get(epi, [])
    if pre_src:
        e("v_add_u32 v13, s24, v3")
        e("v_lshlrev_b32 v13, 10, v13")
        e("v_lshl_add_u32 v13, v4, 5, v13")
        e("s_lshl_b32 s27, s4, 8"); e("s_lshl_b32 s28, s5, 6"); e("s_add_u32 s27, s27, s28")
        for n_, (bp, off) in enumerate(pre_src):
            srd(e, 28, bp, off, 2*MB)
            e(f"buffer_load_dwordx4 a[{8*n_}:{8*n_+3}], v13, s[28:31], s27 offen")
            e(f"buffer_load_dwordx4 a[{8*n_+4}:{8*n_+7}], v13, s[28:31], s27 offen offset:16")
    WB = [128, 192]
    XB = [112, 32]
    def wload(ch, buf):
        if not lds_mode:
            for s in range(4):
                ks = ch * 4 + s
                if ks >= NS: break
                r = XB[buf] + 4 * s
                e(f"buffer_load_dwordx4 v[{r}:{r+3}], v12, s[16:19], 0 offen offset:{32*ks}")
        for s in range(4):
            ks = ch * 4 + s
            if ks >= NS: break
            for i in range(8):
                off = (16 * ks + i) * N * 2
                r = WB[buf] + s * 16 + i * 2
                if off < 4096:
                    e(f"buffer_load_dwordx2 v[{r}:{r+1}], v5, s[20:23], s26 offen offset:{off}")
                else:
                    e(f"s_add_u32 s28, s26, {off:#x}")
                    e(f"buffer_load_dwordx2 v[{r}:{r+1}], v5, s[20:23], s28 offen")
    def nload_(ch): return (8 if lds_mode else 9) * max(0, min(4, NS - ch * 4))
    nload = nload_
    nch = (NS + 3) // 4
    if lds_mode:
        e("v_lshrrev_b32 v6, 3, v0")
        e("v_and_b32 v7, 7, v0")
        e("v_add_u32 v8, s24, v6")
        e(f"v_mul_u32_u24 v8, {xstride}, v8")
        e("v_lshl_add_u32 v8, v7, 4, v8")
        for i in range(8):
            e(f"buffer_load_dwordx4 v[{16+4*i}:{19+4*i}], v8, s[16:19], 0 offen offset:{128*i}")
        wload(0, 0)
        e(f"s_waitcnt vmcnt({nload(0)})")
        if nch > 1: wload(1, 1)
        for r in range(32):
            e(f"v_lshlrev_b32 v{48+2*r}, 16, v{16+r}")
            e(f"v_and_b32 v{49+2*r}, 0xffff0000, v{16+r}")
        def ln_pass(first):
            e("v_add_f32 v9, v48, v49")
            for r in range(50, 112): e(f"v_add_f32 v9, v9, v{r}")
            for dpp in ("quad_perm:[1,0,3,2]", "quad_perm:[2,3,0,1]", "row_half_mirror"):
                e("s_nop 1")
                e(f"v_add_f32_dpp v9, v9, v9 {dpp} row_mask:0xf bank_mask:0xf")
            e("v_mul_f32 v9, 0x3b000000, v9")
            for r in range(48, 112): e(f"v_sub_f32 v{r}, v{r}, v9")
            e("v_mul_f32 v10, v48, v48")
            for r in range(49, 112): e(f"v_fmac_f32 v10, v{r}, v{r}")
            for dpp in ("quad_perm:[1,0,3,2]", "quad_perm:[2,3,0,1]", "row_half_mirror"):
                e("s_nop 1")
                e(f"v_add_f32_dpp v10, v10, v10 {dpp} row_mask:0xf bank_mask:0xf")
            e("v_mov_b32 v11, 0x3727c5ac")
            e("v_fmac_f32 v11, 0x3b000000, v10")
            e("v_rsq_f32 v11, v11")
            e("s_nop 0")
            for r in range(48, 112): e(f"v_mul_f32 v{r}, v{r}, v11")
        ln_pass(True)
        for r in range(32):
            e(f"v_cvt_pk_bf16_f32 v{16+r}, v{48+2*r}, v{49+2*r}")
        if mode == 'ln2':
            e("s_cmp_lg_u32 s4, 0")
            e("s_cbranch_scc1 L_noxb_" + name)
            srd(e, 28, 6, WS_XB, 2*MB)
            for i in range(8):
                e(f"buffer_store_dwordx4 v[{16+4*i}:{19+4*i}], v8, s[28:31], 0 offen offset:{128*i}")
            e.lab("L_noxb_" + name)
            for r in range(32):
                e(f"v_lshlrev_b32 v{48+2*r}, 16, v{16+r}")
                e(f"v_and_b32 v{49+2*r}, 0xffff0000, v{16+r}")
            ln_pass(False)
            for r in range(32):
                e(f"v_cvt_pk_bf16_f32 v{16+r}, v{48+2*r}, v{49+2*r}")
        e(f"v_mul_u32_u24 v9, {XROW}, v6")
        e("v_lshl_add_u32 v9, v7, 4, v9")
        for i in range(8):
            e(f"ds_write_b128 v9, v[{16+4*i}:{19+4*i}] offset:{128*i}")
        e("s_waitcnt lgkmcnt(0)")
        e("s_barrier")
        e(f"v_mul_u32_u24 v9, {XROW}, v3")
        e("v_lshl_add_u32 v9, v4, 4, v9")
        e("s_lshl_b32 s27, s25, 5")
        e("v_add_u32 v9, s27, v9")
    else:
        e("v_add_u32 v8, s24, v3")
        e(f"v_mul_u32_u24 v8, {xstride}, v8")
        e("v_lshl_add_u32 v8, v4, 4, v8")
        e("s_lshl_b32 s27, s25, 5")
        e("v_add_u32 v12, s27, v8")
        if mode == 'shift':
            e("s_mov_b32 s27, 0xfffffc00")
            e("s_cmp_eq_u32 s5, 1"); e("s_cselect_b32 s27, 1024, s27")
            e("s_cmp_eq_u32 s5, 2"); e("s_cselect_b32 s27, 0xfffff800, s27")
            e("s_cmp_eq_u32 s5, 3"); e("s_cselect_b32 s27, 2048, s27")
            e("v_add_u32 v12, s27, v12")
        wload(0, 0)
        if nch > 1: wload(1, 1)
    for r in range(64): e(f"v_mov_b32 v{48+r}, 0")
    vm_after = 0
    for ks in range(NS):
        ch, s = ks // 4, ks % 4
        buf = ch % 2
        xr = 40 + 4 * (ks % 2) if lds_mode else XB[buf] + 4 * s
        skip = (not uniform_k) and ks >= min(ksw)
        if skip:
            e(f"s_cmp_ge_u32 s5, {nks%4}")
            e(f"s_cbranch_scc1 L_skip_{name}")
        if lds_mode: e(f"ds_read_b128 v[{xr}:{xr+3}], v9 offset:{32*ks}")
        if s == 0:
            later = 0
            if ch + 1 < nch: later += nload(ch + 1)
            e(f"s_waitcnt vmcnt({min(later,63)})")
        wb = WB[buf] + s * 16
        for j in range(4):
            for q in range(4):
                sel = "s40" if j % 2 == 0 else "s41"
                e(f"v_perm_b32 v{16+4*j+q}, v{wb+(2*q+1)*2+j//2}, v{wb+(2*q)*2+j//2}, {sel}")
        if s == 3 and ch + 2 < nch:
            pass
        e("s_waitcnt lgkmcnt(0)" if lds_mode else "s_nop 1")
        for j in range(4):
            a, b = f"v[{16+4*j}:{19+4*j}]", f"v[{xr}:{xr+3}]"
            if swap: a, b = b, a
            e(f"v_mfma_f32_32x32x16_bf16 v[{48+16*j}:{63+16*j}], {a}, {b}, v[{48+16*j}:{63+16*j}]")
        if s == 3 and ch + 2 < nch:
            wload(ch + 2, buf)
    if not uniform_k: e.lab("L_skip_" + name)
    e("s_nop 7"); e("s_nop 7")
    e("s_waitcnt vmcnt(0)")
    e("s_barrier")
    e("v_lshlrev_b32 v9, 4, v2")
    e("s_lshl_b32 s27, s5, 12")
    e("v_add_u32 v10, s27, v9")
    for q in range(4):
        for j in range(4):
            r = 48 + 16 * j + 4 * q
            e(f"ds_write_b128 v10, v[{r}:{r+3}] offset:{q*16384 + j*1024}")
    e("s_waitcnt lgkmcnt(0)")
    e("s_barrier")
    e("s_lshl_b32 s27, s5, 14")
    e("v_add_u32 v10, s27, v9")
    for w in range(4):
        for j in range(4):
            e(f"ds_read_b128 v[{128+16*w+4*j}:{131+16*w+4*j}], v10 offset:{w*4096 + j*1024}")
    e("s_waitcnt lgkmcnt(0)")
    for r in range(16):
        e(f"v_add_f32 v{48+r}, v{128+r}, v{144+r}")
        e(f"v_add_f32 v{64+r}, v{160+r}, v{176+r}")
    for r in range(16): e(f"v_add_f32 v{48+r}, v{48+r}, v{64+r}")
    R = lambda f: 48 + 4 * (f % 4) + f // 4
    if not swap:
        e("v_add_u32 v8, s24, v3")
        e("s_lshl_b32 s27, s4, 8")
        e("s_lshl_b32 s28, s5, 6")
        e("s_add_u32 s27, s27, s28")
        e("v_lshlrev_b32 v9, 5, v4")
        e("v_add_u32 v9, s27, v9")
    def row_addr(stride):
        e(f"v_mul_u32_u24 v10, {stride}, v8")
        e("v_add_u32 v10, v10, v9")
    def pack_store(sr):
        for q in range(8): e(f"v_cvt_pk_bf16_f32 v{16+q}, v{R(2*q)}, v{R(2*q+1)}")
        e(f"buffer_store_dwordx4 v[16:19], v10, s[{sr}:{sr+3}], 0 offen")
        e(f"buffer_store_dwordx4 v[20:23], v10, s[{sr}:{sr+3}], 0 offen offset:16")
    def add_bf16_row(sr, base):
        bp, off = {('res',0):(10,0),('x1',0):(6,WS_XB),('out',0):(6,WS_X1),('out',8):(6,WS_H)}[(epi, sr)]
        srd(e, 28, bp, off, 2*MB)
        e(f"buffer_load_dwordx4 v[{base}:{base+3}], v10, s[28:31], 0 offen")
        e(f"buffer_load_dwordx4 v[{base+4}:{base+7}], v10, s[28:31], 0 offen offset:16")
        e("s_waitcnt vmcnt(0)")
        for q in range(8):
            e(f"v_lshlrev_b32 v11, 16, v{base+q}")
            e(f"v_add_f32 v{R(2*q)}, v{R(2*q)}, v11")
            e(f"v_and_b32 v11, 0xffff0000, v{base+q}")
            e(f"v_add_f32 v{R(2*q+1)}, v{R(2*q+1)}, v11")
    def gelu():
        for r in range(48, 64):
            e(f"v_mul_f32 v16, v{r}, v{r}")
            e("v_fma_f32 v16, v16, s42, 1.0")
            e(f"v_mul_f32 v16, v16, v{r}")
            e("v_mul_f32 v16, s43, v16")
            e("v_exp_f32 v16, v16")
            e("s_nop 0")
            e("v_add_f32 v16, 1.0, v16")
            e("v_rcp_f32 v16, v16")
            e("s_nop 0")
            e(f"v_mul_f32 v{r}, v{r}, v16")
    if epi == 'qk':
        e("s_cmp_lt_u32 s4, 4")
        e("s_cselect_b32 s28, 0x3eb8aa3b, 1.0")
        for r in range(48, 64): e(f"v_mul_f32 v{r}, s28, v{r}")
        srd(e, 28, 6, WS_Q, 4*MB)
        e("s_lshl_b32 s27, s4, 19")
        e("s_lshl_b32 s32, s5, 17")
        e("s_add_u32 s27, s27, s32")
        e("v_lshlrev_b32 v10, 16, v4")
        e("v_lshl_add_u32 v10, v8, 5, v10")
        e("v_add_u32 v10, s27, v10")
        pack_store(28)
    elif epi == 'v':
        srd(e, 28, 6, WS_VT, 2*MB)
        e("s_sub_u32 s27, s4, 8")
        e("s_lshl_b32 s27, s27, 19")
        e("s_lshl_b32 s32, s24, 1")
        e("s_add_u32 s27, s27, s32")
        e("s_lshr_b32 s32, s5, 1"); e("s_lshl_b32 s32, s32, 5")
        e("s_add_u32 s27, s27, s32")
        e("s_and_b32 s32, s5, 1"); e("s_lshl_b32 s32, s32, 3")
        e("s_add_u32 s27, s27, s32")
        e("v_lshlrev_b32 v10, 14, v3")
        e("v_lshl_add_u32 v10, v4, 4, v10")
        e("v_add_u32 v10, s27, v10")
        for j in range(4):
            e(f"v_cvt_pk_bf16_f32 v16, v{48+4*j}, v{49+4*j}")
            e(f"v_cvt_pk_bf16_f32 v17, v{50+4*j}, v{51+4*j}")
            e(f"s_mov_b32 s33, {j*4096}")
            e(f"buffer_store_dwordx2 v[16:17], v10, s[28:31], s33 offen")
            e("s_nop 1")
    elif epi == 'res':
        row_addr(1024)
        add_bf16_row(0, 24)
        srd(e, 28, 6, WS_H, 2*MB)
        pack_store(28)
    elif epi == 'gelu':
        e("s_mov_b32 s42, 0x3d372713")
        e("s_mov_b32 s43, 0xc0135761")
        gelu()
        stride = 2 * N
        row_addr(stride)
        srd(e, 28, 6, WS_HH if N == 512 else WS_T, 2048 * stride)
        if N % 128:
            e(f"s_lshl_b32 s27, s4, 7"); e("s_lshl_b32 s32, s5, 5"); e("s_add_u32 s27, s27, s32")
            e(f"s_cmp_ge_u32 s27, {N}")
            e("s_cbranch_scc1 L_end_" + name)
        pack_store(28)
    elif epi == 'x1':
        row_addr(1024)
        add_bf16_row(0, 24)
        srd(e, 28, 6, WS_X1, 2*MB)
        pack_store(28)
    elif epi == 'out':
        row_addr(1024)
        add_bf16_row(0, 24)
        add_bf16_row(8, 24)
        srd(e, 28, 12, 0, 2*MB)
        pack_store(28)
    e.lab("L_end_" + name)
    e("s_endpgm")
    return e.text(), 256, 64 * NFB, 65536

if __name__ == "__main__":
    from attn import attn
    kernels = []
    qk = gemm("k1qk", ('ka','x'), 1024, 512, 'ln1', 'wqkv', 1536, 'qk', nfb=8)
    vv = gemm("k1v", ('ka','x'), 1024, 512, 'ln1', 'wqkv', 1536, 'v', swap=True, fb_lo=8, nfb=4)
    pre = "k1_kernel:\n    s_cmp_lt_u32 s2, 512\n    s_cbranch_scc1 k1qk\n    s_sub_u32 s2, s2, 512\n    s_branch k1v\n"
    kernels.append(("k1_kernel", pre + qk[0] + vv[0], 256, 768, 65536))
    kernels.append(("k2attn_kernel",) + attn("k2attn_kernel"))
    kernels.append(("k3_kernel",) + gemm("k3_kernel", ('ws',WS_O), 1024, 512, 'plain', 'wo', 512, 'res'))
    kernels.append(("k4_kernel",) + gemm("k4_kernel", ('ws',WS_H), 1024, 512, 'ln2', 'w1', 512, 'gelu'))
    kernels.append(("k5_kernel",) + gemm("k5_kernel", ('ws',WS_HH), 1024, 512, 'shift', 'w2', 512, 'x1'))
    kernels.append(("k6_kernel",) + gemm("k6_kernel", ('ws',WS_X1), 1024, 512, 'ln1', 'w3', 1376, 'gelu'))
    kernels.append(("k7_kernel",) + gemm("k7_kernel", ('ws',WS_T), 2752, 1376, 'plain', 'w4', 512, 'out'))
    out = ["; generated by gen/gen.py"]
    for n, _, _, g, lds, *rest in kernels:
        blk = rest[0] if rest else 256
        out.append(f"; @launch kernel={n} grid=({g},1,1) block=({blk},1,1) lds={lds}")
    out.append('.amdgcn_target "amdgcn-amd-amdhsa--gfx950"\n.text')
    for n, body, vg, g, lds, *rest in kernels:
        out.append(f".globl {n}\n.p2align 8\n.type {n},@function\n" + body + kd(n, vg))
    open(f"cdna_kernels/{NAME}.s", "w").write("\n".join(out))
```
